```python
import torch

def _softmax(x, axis=-1):
    return torch.softmax(x, dim=axis)
def _gelu(x):
    return torch.nn.functional.gelu(x, approximate="tanh")
def _silu(x):
    return torch.nn.functional.silu(x)
def _sigmoid(x):
    return torch.sigmoid(x)
def _layernorm(x, axis=-1, eps=1e-5):
    m = x.mean(dim=axis, keepdim=True)
    v = x.var(dim=axis, keepdim=True, unbiased=False)
    return (x - m) / torch.sqrt(v + eps)
def _scatter_add(tgt, idx, src, axis=0):
    return tgt.clone().index_add_(axis, idx, src)
def _segment_sum(src, seg, n):
    out = torch.zeros((n,) + src.shape[1:], dtype=src.dtype)
    return out.index_add_(0, seg, src)
def _pad(x, pw):
    flat = tuple(v for pair in reversed(pw) for v in pair)
    return torch.nn.functional.pad(x, flat)

kernel_name = 'gated_mix__compressed_kv_cla__glu_gated_swiglu__prompt'

def setup_inputs():

    _w = (lambda a: (lambda t: t.to(torch.bfloat16) if t.is_floating_point() else t)(torch.as_tensor(a)))
    def _A_setup():
        B, H, Sq, Sk, D, M = 1, 16, 2048, 2048, 256, 448
        Dc = 4 * D
        return {
            "x": _w((lambda *s: torch.randn(*s, dtype=torch.bfloat16) * 0.05)(B, Sq, M)),
            "c_kv": _w((lambda *s: torch.randn(*s, dtype=torch.bfloat16) * 0.4)(B, Sk, Dc)),
            "w_q": _w((lambda *s: torch.randn(*s, dtype=torch.bfloat16) * 6.4)(M, H, D) * (M ** -0.5)),
            "w_uk": _w((lambda *s: torch.randn(*s, dtype=torch.bfloat16) * 6.4)(Dc, H, D) * (Dc ** -0.5)),
            "w_uv": _w((lambda *s: torch.randn(*s, dtype=torch.bfloat16) * 0.4)(Dc, H, D) * (Dc ** -0.5)),
            "w_o": _w((lambda *s: torch.randn(*s, dtype=torch.bfloat16) * 0.4)(H, D, M) * ((H * D) ** -0.5)),
        }
    _A_in = _A_setup()

    def _B_setup():
        B, S, D, F = 1, 2048, 448, 1792
        return {
            "x": _w((lambda *s: torch.randn(*s, dtype=torch.bfloat16) * 0.05)(B, S, D)),
            "w1": _w((lambda *s: torch.randn(*s, dtype=torch.bfloat16) * 1.6)(D, F) * (2.0 / D) ** 0.5),
            "w3": _w((lambda *s: torch.randn(*s, dtype=torch.bfloat16) * 1.6)(D, F) * (2.0 / D) ** 0.5),
            "w2": _w((lambda *s: torch.randn(*s, dtype=torch.bfloat16) * 1.6)(F, D) * (2.0 / F) ** 0.5),
        }
    _B_in = _B_setup()

    return {
        "A_x": _A_in["x"],
        "A_c_kv": _A_in["c_kv"],
        "A_w_q": _A_in["w_q"],
        "A_w_uk": _A_in["w_uk"],
        "A_w_uv": _A_in["w_uv"],
        "A_w_o": _A_in["w_o"],
        "B_x": _B_in["x"],
        "B_w1": _B_in["w1"],
        "B_w3": _B_in["w3"],
        "B_w2": _B_in["w2"],
        "gate_w": _w((lambda *s: torch.randn(*s, dtype=torch.bfloat16) * 0.05)(448) * 16.0),
    }

def reference(A_x, A_c_kv, A_w_q, A_w_uk, A_w_uv, A_w_o, B_x, B_w1, B_w3, B_w2, gate_w):
    def _A_ref(x, c_kv, w_q, w_uk, w_uv, w_o):
        B, Sq, M = x.shape[0], x.shape[1], x.shape[2]
        Sk = c_kv.shape[1]
        H, D = w_q.shape[1], w_q.shape[2]
        q = torch.einsum("bqm,mhd->bhqd", x, w_q)
        k = torch.einsum("bkc,chd->bhkd", c_kv, w_uk)
        v = torch.einsum("bkc,chd->bhkd", c_kv, w_uv)
        scores = torch.einsum("bhqd,bhkd->bhqk", q, k) * (D ** -0.5)
        off = Sk - Sq
        qi = torch.arange(Sq)[:, None]
        kj = torch.arange(Sk)[None, :]
        cmask = kj <= (qi + off)
        scores = torch.where(cmask[None, None], scores, -1e9)
        p = _softmax(scores, axis=-1)
        ctx = torch.einsum("bhqk,bhkd->bhqd", p, v)
        return torch.einsum("bhqd,hdm->bqm", ctx, w_o)

    def _B_ref(x, w1, w3, w2):
        gate = torch.einsum("bsd,df->bsf", x, w1)
        up = torch.einsum("bsd,df->bsf", x, w3)
        h = _silu(gate) * up
        out = torch.einsum("bsf,fd->bsd", h, w2)
        return out

    x = A_x
    g = _sigmoid((x * gate_w).sum(-1, keepdims=True))
    a = _A_ref(x, A_c_kv, A_w_q, A_w_uk, A_w_uv, A_w_o)
    b = _B_ref(x, B_w1, B_w3, B_w2)
    return g * a + (1 - g) * b
```

```python
import re

REG_RE = re.compile(r"^(-|abs\()?([vas])(\d+)\)?$")
RNG_RE = re.compile(r"^-?([vas])\[(\d+):(\d+)\]$")
TRANS = ("v_exp_f32", "v_log_f32", "v_rcp_f32", "v_rsq_f32", "v_sqrt_f32", "v_sin_f32", "v_cos_f32")
NODEST_S = ("s_cmp", "s_cbranch", "s_branch", "s_waitcnt", "s_barrier", "s_nop", "s_setprio", "s_endpgm",
            "s_sleep", "s_bitcmp")


def regs_of(tok):
    tok = tok.strip()
    m = RNG_RE.match(tok)
    if m:
        return [f"{m.group(1)}{i}" for i in range(int(m.group(2)), int(m.group(3)) + 1)]
    m = REG_RE.match(tok)
    if m:
        return [f"{m.group(2)}{m.group(3)}"]
    if tok == "vcc":
        return ["vcc"]
    if tok in ("exec", "m0"):
        return [tok]
    return []


class Ins:
    __slots__ = ("text", "op", "kind", "r", "w", "srcc", "passes", "tag", "need", "target", "label",
                 "lg", "vm", "nops", "wide_store", "also")

    def __init__(self, text, tag=None, need=None):
        self.text = text
        self.tag = tag
        self.need = need
        self.lg = None
        self.vm = None
        self.nops = 0
        self.srcc = ()
        self.passes = 0
        self.target = None
        self.label = None
        self.wide_store = False
        self.also = set()
        self.r, self.w = set(), set()
        t = text.split(";")[0].strip()
        if need is not None:
            self.op, self.kind = "need", "pseudo"
            return
        if t.endswith(":"):
            self.op, self.kind, self.label = "label", "label", t[:-1]
            return
        if t.startswith(".") or not t:
            self.op, self.kind = "directive", "pseudo"
            return
        parts = t.split(None, 1)
        op = self.op = parts[0]
        rest = parts[1] if len(parts) > 1 else ""
        rest = re.sub(r"(\w+):\[[^\]]*\]", r"\1:x", rest)
        toks = [x.strip() for x in rest.split(",")] if rest else []
        mods = []
        if toks:
            last = toks[-1].split()
            if last:
                toks[-1] = last[0]
                mods = last[1:]
        ops = [regs_of(x) for x in toks]
        allr = lambda k: set(x for o in ops[k:] for x in o)
        if op.startswith("v_mfma"):
            self.kind = "mfma"
            self.w = set(ops[0])
            self.r = allr(1)
            self.srcc = tuple(ops[3])
            self.passes = 8 if "32x32" in op else 4
        elif op.startswith("v_"):
            self.kind = "trans" if op.replace("_e32", "").replace("_e64", "") in TRANS else "valu"
            if op.startswith("v_cmp"):
                self.w, self.r = set(ops[0]), allr(1)
            elif op.startswith("v_permlane") and "swap" in op:
                self.w = self.r = allr(0)
                self.kind = "permlane"
            elif op.startswith(("v_add_co", "v_sub_co", "v_addc_co", "v_subb_co")):
                self.w, self.r = set(ops[0]) | set(ops[1]), allr(2)
            elif op == "v_nop":
                pass
            else:
                self.w, self.r = set(ops[0]), allr(1)
                if op.startswith(("v_fmac", "v_dot2c", "v_writelane")):
                    self.r |= set(ops[0])
            if any(m.startswith(("row_", "quad_perm", "wave_")) for m in mods):
                self.kind = "dpp"
                self.r |= set(ops[0])
        elif op.startswith("ds_"):
            if op.startswith(("ds_read", "ds_bpermute", "ds_swizzle")):
                self.kind = "dsr"
                self.w, self.r = set(ops[0]), allr(1)
            else:
                self.kind = "dsw"
                self.r = allr(0)
        elif op.startswith(("buffer_", "global_")):
            if op.startswith(("buffer_inv", "buffer_wbl2")):
                self.kind = "vmst"
            elif "load" in op and "lds" in mods:
                self.kind = "dma"
                self.r = allr(0) | {"m0"}
            elif "load" in op:
                self.kind = "vmld"
                self.w, self.r = set(ops[0]), allr(1)
            elif "atomic" in op and "sc0" in mods:
                self.kind = "vmld"
                self.w, self.r = set(ops[0]), allr(0)
            else:
                self.kind = "vmst"
                self.r = allr(0)
                self.wide_store = op.endswith(("x3", "x4"))
                self.srcc = tuple(ops[0]) if op.startswith("buffer_") else tuple(ops[1])
        elif op.startswith("s_"):
            if op.startswith(("s_load", "s_memtime", "s_memrealtime", "s_buffer_load")):
                self.kind = "smem"
                self.w, self.r = set(ops[0]), allr(1)
            elif op.startswith(NODEST_S):
                self.kind = "salu"
                self.r = allr(0)
                if op.startswith("s_cbranch") or op == "s_branch":
                    self.kind = "branch"
                    self.target = toks[0]
                elif op == "s_waitcnt":
                    self.kind = "wait"
                elif op == "s_endpgm":
                    self.kind = "end"
            else:
                self.kind = "salu"
                self.w, self.r = set(ops[0]), allr(1)
                if "saveexec" in op:
                    self.w |= {"exec"}
                if op.startswith(("s_addk", "s_mulk", "s_cmov", "s_bitset")):
                    self.r |= set(ops[0])
        else:
            raise ValueError("cannot classify: " + text)

    def slots(self):
        if self.kind in ("pseudo", "label"):
            return 0
        if self.op == "s_nop":
            return int(self.text.split()[1]) + 1
        return 1


VALUISH = ("valu", "trans", "permlane", "dpp")
VMEM = ("vmld", "vmst", "dma")
HIST = 22


def required_states(prod, cons):
    need = 0
    pk, ck = prod.kind, cons.kind
    if pk == "mfma":
        big = prod.passes == 8
        if ck == "mfma":
            ab = cons.r - set(cons.srcc)
            if prod.w & ab:
                need = max(need, 12 if big else 8)
            cset = set(cons.srcc)
            if prod.w & cset and (prod.w != cset or prod.passes != cons.passes):
                need = max(need, 10 if big else 6)
            if prod.w & cons.w and not (prod.w & cset):
                need = max(need, 12 if big else 8)
        elif ck in VALUISH or ck in VMEM or ck in ("dsr", "dsw"):
            if prod.w & (cons.r | cons.w):
                need = max(need, 12 if big else 8)
            if ck in VALUISH and set(prod.srcc) & cons.w:
                need = max(need, 7 if big else 3)
    elif pk in VALUISH:
        vw = {x for x in prod.w if x[0] in "va" and x != "vcc"}
        sw = prod.w - vw
        if ck == "mfma" and vw & cons.r:
            need = max(need, 2)
        if ck in ("permlane", "dpp") and vw & cons.r:
            need = max(need, 2)
        if pk == "trans" and ck in VALUISH and ck != "trans" and vw & cons.r:
            need = max(need, 1)
        if cons.op.startswith(("v_readfirstlane", "v_readlane")) and vw & cons.r:
            need = max(need, 1)
        if sw & cons.r:
            if ck in VMEM:
                need = max(need, 5)
            elif ck in VALUISH:
                need = max(need, 4 if cons.op.startswith(("v_readlane", "v_writelane")) else 2)
            elif ck in ("salu", "branch"):
                need = max(need, 1)
        if "vcc" in sw and cons.op in ("s_cbranch_vccz", "s_cbranch_vccnz"):
            need = max(need, 1)
    elif pk == "salu":
        if "m0" in prod.w and ck == "dma":
            need = max(need, 1)
        if "exec" in prod.w and ck == "mfma":
            need = max(need, 1)
    elif pk == "vmst" and prod.wide_store:
        if set(prod.srcc) & cons.w:
            need = max(need, 2 if ck in VALUISH or ck == "mfma" else 1)
    return need


class Asm:
    def __init__(self):
        self.ins = []

    def __call__(self, text, tag=None):
        for line in text.split("\n"):
            line = line.strip()
            if line:
                self.ins.append(Ins(line, tag=tag))

    def need(self, *tags):
        self.ins.append(Ins("", need=set(tags)))

    def extend(self, items):
        for x in items:
            if isinstance(x, Ins):
                self.ins.append(x)
            else:
                self(x)

    def finalize(self, entries):
        ins = self.ins
        labels = {x.label: i for i, x in enumerate(ins) if x.label}
        for rnd in range(60):
            changed = False
            seen = set()
            work = [(labels[e], (), (), ()) for e in entries]
            steps = 0
            while work:
                i, lg, vm, hist = work.pop()
                while True:
                    x = ins[i]
                    if x.kind == "label":
                        key = (i, lg, vm, hist)
                        if key in seen:
                            break
                        seen.add(key)
                    steps += 1
                    if steps > 6000000:
                        raise RuntimeError("state explosion in finalize")
                    touch = x.r | x.w | x.also
                    if x.need is not None:
                        idx = [k for k, p in enumerate(vm) if p[0] in x.need]
                        if idx:
                            n = min(len(vm) - 1 - idx[-1], 63)
                            if x.vm is None or n < x.vm:
                                x.vm, changed = n, True
                    elif touch:
                        idx = [k for k, p in enumerate(lg) if p[1] & touch]
                        if idx:
                            n = 0 if any(p[0] == "smem" for p in lg) else min(len(lg) - 1 - idx[-1], 15)
                            if x.lg is None or n < x.lg:
                                x.lg, changed = n, True
                        idx = [k for k, p in enumerate(vm) if p[1] & touch]
                        if idx:
                            n = min(len(vm) - 1 - idx[-1], 63)
                            if x.vm is None or n < x.vm:
                                x.vm, changed = n, True
                    extra = 0
                    if x.lg is not None or x.vm is not None:
                        extra = 1
                        if x.lg is not None:
                            lg = lg[len(lg) - x.lg:] if x.lg < len(lg) else lg
                            if x.lg == 0:
                                lg = ()
                        if x.vm is not None:
                            vm = vm[len(vm) - x.vm:] if x.vm < len(vm) else vm
                            if x.vm == 0:
                                vm = ()
                    if x.kind == "wait":
                        m = re.search(r"lgkmcnt\((\d+)\)", x.text)
                        if m:
                            n = int(m.group(1))
                            if n == 0:
                                lg = ()
                            elif n < len(lg) and not any(p[0] == "smem" for p in lg):
                                lg = lg[len(lg) - n:]
                        m = re.search(r"vmcnt\((\d+)\)", x.text)
                        if m:
                            n = int(m.group(1))
                            vm = () if n == 0 else (vm[len(vm) - n:] if n < len(vm) else vm)
                    if x.kind not in ("pseudo", "label"):
                        short = 0
                        for j, age in hist:
                            req = required_states(ins[j], x)
                            if req > age + extra:
                                short = max(short, req - age - extra)
                        if short > x.nops:
                            x.nops, changed = short, True
                    adv = extra + x.nops + x.slots()
                    if adv:
                        hist = tuple((j, a + adv) for j, a in hist if a + adv < HIST)
                    if x.kind in ("mfma",) + VALUISH or (x.kind == "salu" and x.w & {"m0", "exec"}) or x.wide_store:
                        hist = hist + ((i, 0),)
                    if x.kind in ("dsr", "dsw", "smem"):
                        lg = (lg + ((x.kind, frozenset(x.w)),))[-24:]
                    elif x.kind in VMEM:
                        vm = (vm + ((x.tag, frozenset(x.w)),))[-96:]
                    if x.kind == "end":
                        break
                    if x.kind == "branch":
                        t = labels[x.target]
                        if x.op == "s_branch":
                            i = t
                            continue
                        work.append((t, lg, vm, hist))
                    i += 1
            if not changed:
                return
        raise RuntimeError("finalize did not converge")

    def text(self):
        out = []
        for x in self.ins:
            w = []
            if x.vm is not None:
                w.append(f"vmcnt({x.vm})")
            if x.lg is not None:
                w.append(f"lgkmcnt({x.lg})")
            if w:
                out.append("    s_waitcnt " + " ".join(w))
            n = x.nops
            while n > 0:
                k = min(n, 16)
                out.append(f"    s_nop {k - 1}")
                n -= k
            if x.need is None:
                out.append(x.text if x.kind == "label" or x.text.startswith(".") else "    " + x.text)
        return "\n".join(out)


def weave(spine, fillers, start=0, end=None):
    end = len(spine) if end is None else end
    gaps = [[] for _ in spine]
    n = len(fillers)
    for k, f in enumerate(fillers):
        gaps[start + (k * (end - start)) // n].append(f)
    return gaps


def merge(a, spine, *gapsets):
    for m, s in enumerate(spine):
        a.extend([s])
        for g in gapsets:
            a.extend(g[m])


def descriptor(name, vgpr=512, accum=256, sgpr=102, kernarg=112):
    return f""".p2align 6
.amdhsa_kernel {name}
  .amdhsa_next_free_vgpr {vgpr}
  .amdhsa_next_free_sgpr {sgpr}
  .amdhsa_accum_offset {accum}
  .amdhsa_group_segment_fixed_size 0
  .amdhsa_kernarg_size {kernarg}
  .amdhsa_user_sgpr_count 2
  .amdhsa_user_sgpr_kernarg_segment_ptr 1
  .amdhsa_system_sgpr_workgroup_id_x 1
.end_amdhsa_kernel"""
```

```python
S, M, DC, H, D, F = 2048, 448, 1024, 16, 256, 1792
MB = 1 << 20
WS_KV = 0
WS_Q = 32 * MB
WS_AO = 48 * MB
AO_STEPS = 184
AO_H = 56
WS_G = 72 * MB
WS_PO = 80 * MB
WS_PS = 88 * MB
WS_SIZE = 96 * MB
BIG = 0x40000000
QSCALE = 1.4426950408889634 / 16.0
```

```python
from asmlib import Ins, merge
from common import *
from phase_proj import MF, S_WS, f32, place, rng, sH, sIDX, sW

VDMA, R0, R1, VL16, VDQ = 5, 6, 7, 8, 9
T0 = 11
VC, VS, VP, VE, VL, VONE, VNM, VT, VO = 16, 32, 64, 80, 88, 96, 100, 102, 128
VNEG = 126
AQ, AQN, ARING = 0, 64, 128
PD = 6
sK, sKEND, sKNEXT, sKEND2, sM, sV, sT, sLAST, sMASK, sBIT = ("s24", "s25", "s26", "s27", "s28", "s29", "s30",
                                                            "s31", "s64", "s65")
sHIST = ("s66", "s67")
SCMP = 68
OFFSET = 7.0


def Sreg(u, kb, qb):
    return VS + 16 * u + 4 * (2 * kb + qb)


def ring(n):
    return rng("a", ARING + 4 * (n % 8), 4)


def kread(n, reg):
    return f"ds_read_b128 {ring(n)}, v{reg} offset:{((n % 2) * 8 + n // 2) * 1024}"


def vread(n, reg):
    return f"ds_read_b128 {ring(n)}, v{reg} offset:{16384 + (n - 16) * 1024}"


def qk_spine(u):
    out = []
    for ds in range(8):
        for kb, qb in ((0, 0), (0, 1), (1, 1), (1, 0)):
            d = rng("v", Sreg(u, kb, qb), 4)
            c = rng("v", VC + 4 * (2 * kb + qb), 4) if ds == 0 else d
            out.append(f"{MF} {d}, {ring(2 * ds + kb)}, {rng('a', AQ + 4 * (8 * qb + ds), 4)}, {c}")
    return out


def pv_spine(u):
    out = []
    for qb in range(2):
        l = rng("v", VL + 4 * qb, 4)
        out.append(f"{MF} {l}, {rng('v', VONE, 4)}, {rng('v', VP + 8 * u + 4 * qb, 4)}, {l}")
    for db in range(16):
        for qq in range(2):
            qb = qq if db % 2 else 1 - qq
            o = rng("v", VO + 4 * (2 * db + qb), 4)
            out.append(f"{MF} {o}, {ring(16 + db)}, {rng('v', VP + 8 * u + 4 * qb, 4)}, {o}")
    return out


def softmax_half(u, qb):
    out = []
    for kb in range(2):
        s, e = Sreg(u, kb, qb), VE + 4 * kb
        out += [[f"v_exp_f32 v{e + r}, v{s + r}"] for r in range(4)]
    p = VP + 8 * u + 4 * qb
    cv = [f"v_cvt_pk_bf16_f32 v{p + r}, v{VE + 2 * r}, v{VE + 2 * r + 1}" for r in range(4)]
    return out[:3] + [[cv[0]] + out[3]] + out[4:5] + [[cv[1]] + out[5]] + out[6:7] + [[cv[2]] + out[7]] + [[], [cv[3]]]


def check(u):
    p = VP + 8 * u
    return [f"v_or3_b32 v{T0}, v{p}, v{p + 1}, v{p + 2}", f"v_or3_b32 v{T0}, v{T0}, v{p + 3}, v{p + 4}",
            f"v_or3_b32 v{T0}, v{T0}, v{p + 5}, v{p + 6}", f"v_bitop3_b32 v{T0}, v{T0}, v{p + 7}, {sBIT} bitop3:0xa8",
            f"v_cmp_ne_u32 vcc, 0, v{T0}"]


def event(u):
    srd = f"s[{S_WS}:{S_WS + 3}]"
    dma = lambda so: [f"buffer_load_dwordx4 v{VDMA}, {srd}, {so} offen offset:{1024 * q} lds" for q in range(4)]
    seq = [f"s_add_u32 {sV}, {sHIST[u]}, 16384", f"s_xor_b32 m0, {sM}, 0x14000"] + dma(sV)
    seq += [f"s_mov_b32 m0, {sM}", f"s_mov_b32 {sHIST[u]}, {sK}"] + dma(sK)
    seq += [f"s_add_u32 {sK}, {sK}, 32768", [f"s_cmp_eq_u32 {sK}, {sKEND}", f"s_cselect_b32 {sK}, {sKNEXT}, {sK}"],
            [f"s_cselect_b32 {sKEND}, {sKEND2}, {sKEND}", f"s_cselect_b32 {sKNEXT}, {BIG}, {sKNEXT}"],
            f"s_add_u32 {sM}, {sM}, 32768", f"s_and_b32 {sM}, {sM}, 0x1ffff"]
    return ["s_waitcnt vmcnt(12)", "s_barrier"], seq


def flat(seq):
    out = []
    for x in seq:
        out.extend(x if isinstance(x, list) else [x])
    return out


def rowmax(u, qb, dst):
    s0, s1 = Sreg(u, 0, qb), Sreg(u, 1, qb)
    t = dst + 1
    return [f"v_max3_f32 v{dst}, v{s0}, v{s0 + 1}, v{s0 + 2}", f"v_max3_f32 v{t}, v{s0 + 3}, v{s1}, v{s1 + 1}",
            f"v_max3_f32 v{dst}, v{dst}, v{s1 + 2}, v{s1 + 3}", f"v_max_f32 v{dst}, v{dst}, v{t}",
            f"v_mov_b32 v{t}, v{dst}", f"v_permlane32_swap_b32 v{dst}, v{t}", f"v_max_f32 v{dst}, v{dst}, v{t}",
            f"v_mov_b32 v{t}, v{dst}", f"v_permlane16_swap_b32 v{dst}, v{t}", f"v_max_f32 v{dst}, v{dst}, v{t}",
            f"v_add_f32 v{dst}, {f32(OFFSET)}, v{dst}"]


def shift(regs, d):
    return [f"v_sub_f32 v{r}, v{r}, v{d}" for r in regs]


def qb_regs(base, qb):
    return [base + 4 * (2 * kb + qb) + r for kb in range(2) for r in range(4)]


def rescale_block(a, name, u, both):
    a(f"{name}:")
    for qb in range(2):
        d = VT + 4 * qb
        a.extend(rowmax(u, qb, d))
        a(f"v_max_f32 v{d}, 0, v{d}\nv_exp_f32 v{d + 1}, -v{d}")
        a.extend(shift([VNM + qb] + qb_regs(VC, qb) + qb_regs(VS + 16 * u, qb), d))
        if both:
            a.extend(shift(qb_regs(VS + 16 * (1 - u), qb), d))
        regs = [VL + 4 * qb + r for r in range(4)] + [VO + 4 * (2 * db + qb) + r for db in range(16) for r in range(4)]
        a.extend([f"v_mul_f32 v{r}, v{r}, v{d + 1}" for r in regs])
        a.extend(flat(softmax_half(u, qb)))
    a(f"s_branch {name}_ret")


def mask_code(tile_plus):
    out = [f"s_add_u32 s3, {sT}, {tile_plus}", "s_lshl_b32 s3, s3, 5"]
    out += [f"v_subrev_u32 v{T0 + qb}, s3, v{VDQ + qb}" for qb in range(2)]
    cm, sel = [], []
    for kb in range(2):
        for qb in range(2):
            for r in range(4):
                k = 4 * (2 * kb + qb) + r
                sp = f"s[{SCMP + 2 * k}:{SCMP + 2 * k + 1}]"
                cm.append(f"v_cmp_le_i32 {sp}, {16 * kb + r}, v{T0 + qb}")
                sel.append(f"v_cndmask_b32 v{VC + k}, v{VNEG}, v{VNM + qb}, {sp}")
    return out + cm + sel


def pairwait(spine, first_frag, nfrag, start):
    out = [Ins(x) for x in spine]
    for n in range(first_frag, first_frag + nfrag, 2):
        extra = set(f"a{ARING + 4 * ((n + 1) % 8) + r}" for r in range(4))
        out[start + 2 * (n - first_frag)].also = extra
    return out


def body(a, name, u):
    rk, rv = (R1, R0) if u == 0 else (R0, R1)
    qk = pairwait(qk_spine(1 - u), 0, 16, 0)
    pv = pairwait(pv_spine(u), 16, 16, 2)
    spine = qk + pv
    gaps = [[] for _ in spine]
    for n in range(PD, 16):
        gaps[2 * (n - PD)].append(kread(n, rk))
    for n in range(16, 32):
        g = 2 * (n - PD)
        gaps[g if g < 32 else g + 2].append(vread(n, rv))
    gaps[55].append(f"v_xor_b32 v{rv}, 0x10000, v{rv}")
    for n in range(PD):
        gaps[min(56 + 2 * n, 65) if n < PD - 1 else 65].append(kread(n, rv))
    place(gaps, softmax_half(u, 1), 1, 2)
    ck = check(u)
    place(gaps, ck, 21, 2)
    bar, seq = event(u)
    gaps[31] += [f"s_cbranch_vccnz {name}_rs{u}", f"{name}_rs{u}_ret:"] + bar
    place(gaps, softmax_half(1 - u, 0), 37, 2)
    pos = 32
    for x in seq[:12]:
        gaps[pos].extend(flat([x]))
        pos += 2 if "buffer" in x else 1
    place(gaps, seq[12:], 57, 1)
    gaps[62] += [f"s_add_u32 {sT}, {sT}, 1"]
    a(f"s_cmp_ge_i32 {sT}, {sMASK}\ns_cbranch_scc1 {name}_mk{u}\n{name}_mk{u}_ret:")
    merge(a, spine, gaps)


def seg_prologue(a, name):
    for r in list(range(VC, VC + 16)) + [VNM, VNM + 1]:
        a(f"v_mov_b32 v{r}, 0")
    a(f"s_add_u32 s3, {sMASK}, 1\ns_cmp_ge_u32 {sT}, s3\ns_cbranch_scc0 {name}_nomask")
    a.extend(mask_code(0))
    a(f"{name}_nomask:")
    spine = qk_spine(0)
    gaps = [[] for _ in spine]
    for n in range(PD):
        a(kread(n, R0))
    for n in range(PD, 16):
        gaps[2 * (n - PD)].append(kread(n, R0))
    zero = [f"v_mov_b32 v{r}, 0" for r in list(range(VL, VL + 8)) + list(range(VO, VO + 128))]
    for k, z in enumerate(zero[:48]):
        gaps[(k * 32) // 48].append(z)
    merge(a, spine, gaps)
    bar, seq = event(1)
    a.extend(bar)
    a.extend(flat(seq))
    for n in range(PD):
        a(kread(n, R1))
    for qb in range(2):
        d = VT + 4 * qb
        a.extend(rowmax(0, qb, d))
        a.extend(shift(qb_regs(VS, qb), d))
        a(f"v_sub_f32 v{VNM + qb}, 0, v{d}")
        for r in qb_regs(VC, qb):
            a(f"v_mov_b32 v{r}, v{VNM + qb}")
    a.extend(flat(softmax_half(0, 0)))
    a.extend(zero[48:])


def seg_tail(a, name):
    for n in range(16, 16 + PD):
        a(vread(n, R1))
    a.extend(flat(softmax_half(1, 1)))
    a.extend(check(1))
    a(f"s_cbranch_vccnz {name}_rst\n{name}_rst_ret:")
    spine = pv_spine(1)
    gaps = [[] for _ in spine]
    for n in range(16 + PD, 32):
        gaps[2 + 2 * (n - PD - 16)].append(vread(n, R1))
    merge(a, spine, gaps)
    a(f"v_xor_b32 v{R1}, 0x10000, v{R1}")


def segment(a, name):
    seg_prologue(a, name + "_p")
    a(f"{name}_loop:")
    body(a, name, 0)
    a(f"s_cmp_eq_u32 {sT}, {sLAST}\ns_cbranch_scc1 {name}_tail")
    body(a, name, 1)
    a(f"s_branch {name}_loop")
    for u in range(2):
        a(f"{name}_mk{u}:")
        a.extend(mask_code(1))
        a(f"s_branch {name}_mk{u}_ret")
        rescale_block(a, f"{name}_rs{u}", u, True)
    rescale_block(a, f"{name}_rst", 1, False)
    a(f"{name}_tail:")
    seg_tail(a, name)


def store_ctx(a, sbase, stride):
    for qb in range(2):
        a(f"v_rcp_f32 v{VT + qb}, v{VL + 4 * qb}")
    for ds in range(8):
        a(f"s_add_u32 s3, {sbase}, {ds * stride}")
        for qb in range(2):
            src = [VO + 4 * (2 * (2 * ds + hf) + qb) + r for hf in range(2) for r in range(4)]
            a.extend([f"v_mul_f32 v{r}, v{r}, v{VT + qb}" for r in src])
            dst = src[0]
            a.extend([f"v_cvt_pk_bf16_f32 v{dst + r}, v{src[2 * r]}, v{src[2 * r + 1]}" for r in range(4)])
            a(f"buffer_store_dwordx4 {rng('v', dst, 4)}, v{VL16}, s[{S_WS}:{S_WS + 3}], s3 offen offset:{qb * 1024}")


def attn_phase(a, name):
    srd = f"s[{S_WS}:{S_WS + 3}]"
    a(f"v_lshlrev_b32 v{VL16}, 4, v1\ns_lshl_b32 {sM}, {sW}, 12\nv_add_u32 v{VDMA}, {sM}, v{VL16}")
    a(f"s_lshl_b32 s3, {sH}, 4\ns_add_u32 s3, s3, {sIDX}\ns_lshl_b32 s3, s3, 2\ns_add_u32 s3, s3, {sW}\ns_lshl_b32 s3, s3, 14")
    a(f"s_add_u32 s3, s3, {WS_Q}")
    a(f"s_lshl_b32 {sK}, {sH}, 21\ns_add_u32 {sK}, {sK}, {WS_KV}")
    a(f"s_add_u32 {sLAST}, {sIDX}, 1\ns_lshl_b32 {sLAST}, {sLAST}, 17\ns_add_u32 {sKEND}, {sK}, {sLAST}")
    a(f"s_mov_b32 {sKNEXT}, {BIG}\ns_mov_b32 {sKEND2}, 0")
    dma = lambda so: [f"buffer_load_dwordx4 v{VDMA}, {srd}, {so} offen offset:{1024 * q} lds" for q in range(4)]
    a(f"s_mov_b32 m0, {sM}")
    a.extend(dma(sK))
    for n in range(16):
        if n % 4 == 0:
            a(f"s_add_u32 s23, s3, {n * 1024}")
        a(f"buffer_load_dwordx4 {rng('a', AQ + 4 * n, 4)}, v{VL16}, {srd}, s23 offen offset:{(n % 4) * 1024}")
    for p in range(1, 4):
        a(f"s_add_u32 m0, {sM}, {p * 32768}\ns_add_u32 s3, {sK}, {p * 32768}")
        a.extend(dma("s3"))
        if p < 3:
            a(f"s_add_u32 m0, {sM}, {(p - 1) * 32768 + 16384}\ns_add_u32 s3, {sK}, {(p - 1) * 32768 + 16384}")
            a.extend(dma("s3"))
    a(f"s_add_u32 {sHIST[1]}, {sK}, {2 * 32768}\ns_add_u32 {sHIST[0]}, {sK}, {3 * 32768}\ns_add_u32 {sK}, {sK}, {4 * 32768}")
    a(f"s_cmp_eq_u32 {sK}, {sKEND}\ns_cselect_b32 {sK}, {sKNEXT}, {sK}")
    a(f"v_mov_b32 v{R0}, v{VL16}\nv_add_u32 v{R1}, 32768, v{VL16}")
    a(f"s_mov_b32 {sT}, 0\ns_lshl_b32 {sMASK}, {sIDX}, 2\ns_add_u32 {sLAST}, {sMASK}, 3\ns_sub_u32 {sMASK}, {sMASK}, 1")
    a(f"s_mov_b32 {sBIT}, 0x40004000")
    a(f"s_lshl_b32 s3, {sIDX}, 2\ns_add_u32 s3, s3, {sW}\ns_lshl_b32 s3, s3, 5")
    a(f"v_and_b32 v2, 15, v1\nv_lshrrev_b32 v3, 4, v1\nv_lshlrev_b32 v3, 2, v3\nv_sub_u32 v2, v2, v3")
    a(f"v_add_u32 v{VDQ}, s3, v2\nv_add_u32 v{VDQ + 1}, 16, v{VDQ}")
    a(f"v_mov_b32 v{VNEG}, {f32(-1e30)}")
    for r in range(4):
        a(f"v_mov_b32 v{VONE + r}, 0x3f803f80")
    a("s_waitcnt vmcnt(20)\ns_barrier")
    segment(a, name + "_s")
    a(f"s_lshl_b32 s23, {sIDX}, 1\ns_lshr_b32 s3, {sW}, 1\ns_add_u32 s23, s23, s3\ns_mul_i32 s23, s23, {AO_STEPS}")
    a(f"s_lshl_b32 s3, {sH}, 3\ns_add_u32 s23, s23, s3\ns_add_u32 s23, s23, {AO_H}\ns_lshl_b32 s23, s23, 12")
    a(f"s_and_b32 s3, {sW}, 1\ns_lshl_b32 s3, s3, 11\ns_add_u32 s23, s23, s3\ns_add_u32 s23, s23, {WS_AO}")
    store_ctx(a, "s23", 4096)
```

```python
from asmlib import Ins, merge
from common import *
from phase_proj import MF, P_OUT, P_W2, P_WO, S_W, S_W2, S_WS, dma4, place, rng, sW, srd

VRD, VD, VL16, VG = 5, 9, 13, 14
VACC, VB2 = 32, 96
AB, AW = 0, 64
sRB, sCB, sA, sWO, sM, sIT, sN1, sN2 = "s24", "s25", "s26", "s27", "s28", "s29", "s30", "s31"


def issue(q):
    ws = f"s[{S_WS}:{S_WS + 3}]"
    w = [Ins(f"s_add_u32 m0, {sM}, {q * 4096}")] + dma4(VD, S_W, sWO) + [Ins(f"s_add_u32 {sWO}, {sWO}, {32 * 896}")]
    b = [Ins(f"buffer_load_dwordx4 {rng('a', AB + 16 * q + 4 * j, 4)}, v{VL16}, {ws}, {sA} offen offset:{j * 1024}")
         for j in range(4)]
    return w, b, Ins(f"s_add_u32 {sA}, {sA}, 4096")


def wreads(q):
    out = []
    for ib in range(4):
        b = AW + 16 * (q % 2) + 4 * ib
        out += [f"ds_read_b64_tr_b16 a[{b}:{b + 1}], v{VRD + ib} offset:{q * 4096}",
                f"ds_read_b64_tr_b16 a[{b + 2}:{b + 3}], v{VRD + ib} offset:{q * 4096 + 2048}"]
    return out


def out_phase(a, name):
    a(f"s_lshr_b32 s3, s2, 3\ns_cmp_ge_u32 s3, 28\ns_cbranch_scc1 {name}_end")
    a(f"s_mul_i32 {sRB}, s3, 37\ns_lshr_b32 {sRB}, {sRB}, 8\ns_mul_i32 {sCB}, {sRB}, 7\ns_sub_u32 {sCB}, s3, {sCB}")
    a(f"s_and_b32 s3, s2, 7\ns_lshl_b32 s3, s3, 2\ns_add_u32 {sRB}, {sRB}, s3")
    srd(a, S_W, P_W2, F * M * 2)
    a(f"v_lshlrev_b32 v{VL16}, 4, v1")
    a("v_lshrrev_b32 v2, 3, v1\nv_bfe_u32 v3, v1, 1, 2\nv_bfe_u32 v4, v1, 4, 2\nv_xor_b32 v3, v3, v4\nv_and_b32 v4, 1, v1")
    a(f"v_lshlrev_b32 v3, 5, v3\nv_lshl_or_b32 v3, v4, 4, v3\nv_mul_u32_u24 v2, 896, v2\nv_add_u32 v{VD}, v2, v3")
    for q in range(1, 4):
        a(f"v_add_u32 v{VD + q}, {q * 6144}, v{VD}")
    a(f"s_min_u32 s3, {sW}, 2\ns_lshl_b32 s3, s3, 4\ns_cmp_eq_u32 {sW}, 3\ns_cselect_b32 s3, 44, s3")
    a(f"s_cmp_lt_u32 {sW}, 2\ns_cselect_b32 {sN1}, 4, 3\ns_add_u32 {sN2}, {sN1}, 8")
    a(f"s_mul_i32 s64, {sRB}, {AO_STEPS}\ns_add_u32 {sA}, s64, s3\ns_lshl_b32 {sA}, {sA}, 12\ns_add_u32 {sA}, {sA}, {WS_AO}")
    a(f"s_lshl_b32 s65, {sCB}, 7\ns_mul_i32 {sWO}, s3, {32 * 896}\ns_add_u32 {sWO}, {sWO}, s65")
    a(f"s_lshl_b32 {sM}, {sW}, 14")
    a(f"s_lshl_b32 s3, {sW}, 5\ns_add_u32 s64, s64, s3\ns_add_u32 s64, s64, {AO_H}\ns_lshl_b32 s64, s64, 12\ns_add_u32 s64, s64, {WS_AO}")
    a(f"s_mul_i32 s3, s3, {32 * 896}\ns_add_u32 s65, s65, s3")
    a(f"v_and_b32 v2, 15, v1\nv_lshlrev_b32 v2, 2, v2\ns_lshl_b32 s3, {sRB}, 8\ns_add_u32 s3, s3, {WS_G}")
    for j in range(4):
        a(f"buffer_load_dword v{VG + j}, v2, s[{S_WS}:{S_WS + 3}], s3 offen offset:{64 * j}")
    for q in range(4):
        w, b, adv = issue(q)
        a.extend(w + b + [adv])
    a("v_lshrrev_b32 v2, 4, v1\nv_bfe_u32 v3, v1, 2, 2\nv_lshl_add_u32 v4, v2, 2, v3\nv_bfe_u32 v3, v4, 1, 2")
    a(f"v_lshlrev_b32 v4, 7, v4\nv_and_b32 v2, 3, v1\nv_lshl_or_b32 v4, v2, 3, v4\nv_add_u32 v4, {sM}, v4")
    for ib in range(4):
        a(f"v_xor_b32 v2, {ib}, v3\nv_lshl_add_u32 v{VRD + ib}, v2, 5, v4")
    for r in range(64):
        a(f"v_mov_b32 v{VACC + r}, 0")
    a(f"s_mov_b32 {sIT}, 1")
    a("s_waitcnt vmcnt(28)")
    a.extend(wreads(0))
    a(f"{name}_loop:")
    a(f"s_cmp_eq_u32 {sIT}, {sN1}\ns_cbranch_scc0 {name}_n1")
    srd(a, S_W, P_WO, H * D * M * 2)
    a(f"s_mov_b32 {sA}, s64\ns_mov_b32 {sWO}, s65\n{name}_n1:")
    a(f"s_cmp_eq_u32 {sIT}, {sN2}\ns_cselect_b32 {sA}, {BIG}, {sA}\ns_cselect_b32 {sWO}, {BIG}, {sWO}")
    for q in range(4):
        spine = []
        for j in range(4):
            for ii in range(4):
                ib = ii if j % 2 == 0 else 3 - ii
                t = rng("v", VACC + 16 * j + 4 * ib, 4)
                spine.append(f"{MF} {t}, {rng('a', AW + 16 * (q % 2) + 4 * ib, 4)}, {rng('a', AB + 16 * q + 4 * j, 4)}, {t}")
        gaps = [[] for _ in spine]
        w, b, adv = issue(q)
        place(gaps, wreads((q + 1) % 4), 0, 1)
        gaps[0].insert(0, "s_waitcnt vmcnt(20)")
        place(gaps, w, 2, 1)
        place(gaps, b[:3], 8, 2)
        gaps[15] += [b[3], adv]
        a("s_waitcnt lgkmcnt(0)")
        merge(a, spine, gaps)
    a(f"s_cmp_eq_u32 {sIT}, {sN1}\ns_cbranch_scc0 {name}_n2")
    for r in range(64):
        a(f"v_mov_b32 v{VB2 + r}, v{VACC + r}\nv_mov_b32 v{VACC + r}, 0")
    a(f"{name}_n2:")
    a(f"s_add_u32 {sIT}, {sIT}, 1\ns_cmp_le_u32 {sIT}, {sN2}\ns_cbranch_scc1 {name}_loop")
    a("s_waitcnt vmcnt(0) lgkmcnt(0)\ns_barrier")
    a(f"v_and_b32 v2, 15, v1\nv_lshrrev_b32 v3, 4, v1\nv_xor_b32 v3, v3, v2\nv_lshlrev_b32 v2, 8, v2\nv_add_u32 v2, {sM}, v2")
    for ib in range(4):
        a(f"v_xor_b32 v4, {4 * ib}, v3\nv_lshl_add_u32 v{VRD + ib}, v4, 4, v2")
    for j in range(4):
        for ib in range(4):
            r = VACC + 16 * j + 4 * ib
            o = VB2 + 16 * j + 4 * ib
            a.extend([f"v_sub_f32 v{r + k}, v{r + k}, v{o + k}" for k in range(4)])
            a.extend([f"v_fma_f32 v{r + k}, v{r + k}, v{VG + j}, v{o + k}" for k in range(4)])
            a(f"ds_write_b128 v{VRD + ib}, {rng('v', r, 4)} offset:{j * 4096}")
    a(f"v_lshrrev_b32 v2, 3, v1\nv_and_b32 v3, 7, v1\nv_lshlrev_b32 v4, 1, v3\nv_xor_b32 v4, v4, v2")
    a(f"s_lshl_b32 s3, {sW}, 12\nv_lshl_add_u32 v18, v2, 8, s3")
    for hq in range(2):
        for c in range(2):
            a(f"v_xor_b32 v19, {8 * hq + c}, v4\nv_lshl_add_u32 v{VD + 2 * hq + c}, v19, 4, v18")
    a(f"v_mul_u32_u24 v2, 896, v2\nv_lshl_add_u32 v18, v3, 4, v2")
    srd(a, S_W2, P_OUT, S * M * 2)
    a(f"s_lshl_b32 s3, {sRB}, 2\ns_add_u32 s3, s3, {sW}\ns_mul_i32 s3, s3, {16 * 896}\ns_lshl_b32 s23, {sCB}, 7\ns_add_u32 s3, s3, s23")
    a(f"s_add_u32 s23, s3, {8 * 896}")
    a("s_waitcnt lgkmcnt(0)\ns_barrier")
    for hq in range(2):
        for pw in range(4):
            for c in range(2):
                r = VACC + 32 * hq + 8 * pw + 4 * c
                a(f"ds_read_b128 {rng('v', r, 4)}, v{VD + 2 * hq + c} offset:{pw * 16384 + hq * 2048}")
    for hq in range(2):
        r = VACC + 32 * hq
        a.extend([f"v_add_f32 v{r + k}, v{r + k}, v{r + 8 + k}" for k in range(8)])
        a.extend([f"v_add_f32 v{r + 16 + k}, v{r + 16 + k}, v{r + 24 + k}" for k in range(8)])
        a.extend([f"v_add_f32 v{r + k}, v{r + k}, v{r + 16 + k}" for k in range(8)])
        a.extend([f"v_cvt_pk_bf16_f32 v{r + k}, v{r + 2 * k}, v{r + 2 * k + 1}" for k in range(4)])
        a(f"buffer_store_dwordx4 {rng('v', r, 4)}, v18, s[{S_W2}:{S_W2 + 3}], {'s23' if hq else 's3'} offen")
    a(f"{name}_end:")
```

```python
import struct
from asmlib import Ins, merge
from common import *

MF = "v_mfma_f32_16x16x32_bf16"


def f32(x):
    return "0x%08x" % struct.unpack("<I", struct.pack("<f", x))[0]


def rng(kind, base, n):
    return f"{kind}[{base}:{base + n - 1}]"


def pair_base(k):
    return ("v", 32 + 8 * k) if k < 28 else ("a", 224 + 8 * (k - 28))


def tile(k, half):
    kind, b = pair_base(k)
    return rng(kind, b + 4 * half, 4)


S_WS, S_ACT, S_W, S_W2 = 4, 8, 12, 16
sW, sH, sIDX = "s20", "s21", "s22"
P_X, P_CKV, P_WQ, P_WUK, P_WUV, P_WO, P_W1, P_W3, P_W2, P_GW, P_OUT, P_DBG, P_WS = (
    32, 34, 36, 38, 40, 42, 46, 48, 50, 52, 54, 56, 58)


def srd(a, dst, ptr, nbytes):
    a(f"s_mov_b32 s{dst}, s{ptr}\ns_mov_b32 s{dst + 1}, s{ptr + 1}")
    a(f"s_mov_b32 s{dst + 2}, {nbytes}\ns_mov_b32 s{dst + 3}, 0x20000")


def entry(a, name, nwg):
    a(f".p2align 8\n.type {name},@function\n{name}:")
    a(f"s_cmp_lt_u32 s2, {nwg}\ns_cbranch_scc1 {name}_go\ns_endpgm\n{name}_go:")
    a("s_load_dwordx16 s[32:47], s[0:1], 0\ns_load_dwordx8 s[48:55], s[0:1], 64\ns_load_dwordx4 s[56:59], s[0:1], 96")
    a("v_lshrrev_b32 v2, 6, v0\nv_and_b32 v1, 63, v0")
    a(f"v_readfirstlane_b32 {sW}, v2")
    a(f"s_and_b32 s3, s2, 7\ns_lshl_b32 s3, s3, 1\ns_lshr_b32 {sIDX}, s2, 7\ns_add_u32 {sH}, s3, {sIDX}")
    a(f"s_lshr_b32 {sIDX}, s2, 3\ns_and_b32 {sIDX}, {sIDX}, 15")
    a("s_waitcnt lgkmcnt(0)")
    srd(a, S_WS, P_WS, WS_SIZE)


def w_dma_voff(a, dst, pitch):
    a("v_lshrrev_b32 v2, 4, v1\nv_bfe_u32 v3, v1, 1, 3\nv_xor_b32 v3, v3, v2\nv_and_b32 v4, 1, v1")
    a("v_lshlrev_b32 v3, 5, v3\nv_lshl_or_b32 v3, v4, 4, v3")
    a(f"v_mul_u32_u24 v2, {pitch}, v2")
    a(f"v_add_u32 v{dst}, v2, v3\nv_add_u32 v{dst + 1}, {4 * pitch - 1024}, v{dst}")
    a(f"v_xor_b32 v3, 128, v3\nv_add_u32 v2, v2, v3")
    a(f"v_add_u32 v{dst + 2}, {8 * pitch - 2048}, v2\nv_add_u32 v{dst + 3}, {12 * pitch - 3072}, v2")


def act_dma_voff(a, dst, pitch):
    a("v_lshrrev_b32 v2, 3, v1\nv_and_b32 v3, 6, v2\nv_and_b32 v4, 7, v1\nv_xor_b32 v3, v3, v4")
    a(f"v_lshlrev_b32 v3, 4, v3\nv_mul_u32_u24 v2, {pitch}, v2\nv_add_u32 v{dst}, v2, v3")
    for q in range(1, 4):
        a(f"v_add_u32 v{dst + q}, {q * (8 * pitch - 1024)}, v{dst}")


def tr_addr(a, dst, units, sub):
    a("v_lshrrev_b32 v2, 4, v1\nv_bfe_u32 v3, v1, 2, 2\nv_lshl_add_u32 v4, v2, 3, v3\nv_lshlrev_b32 v4, 8, v4")
    a("v_and_b32 v2, 1, v2\nv_lshl_or_b32 v3, v2, 2, v3\nv_and_b32 v2, 3, v1\nv_lshl_or_b32 v4, v2, 3, v4")
    a(f"v_add_u32 v4, {sub}, v4")
    for k, u in enumerate(units):
        a(f"v_xor_b32 v2, {u}, v3\nv_lshl_add_u32 v{dst + k}, v2, 5, v4")


def act_addr(a, dst, sub):
    a("v_and_b32 v2, 15, v1\nv_lshrrev_b32 v3, 4, v1\nv_and_b32 v4, 6, v2\nv_xor_b32 v3, v3, v4")
    a(f"v_lshlrev_b32 v2, 7, v2\nv_add_u32 v2, {sub}, v2")
    a(f"v_lshl_add_u32 v{dst}, v3, 4, v2\nv_xor_b32 v3, 4, v3\nv_lshl_add_u32 v{dst + 1}, v3, 4, v2")


def dma4(voff, srdb, soff, tag=None):
    return [Ins(f"buffer_load_dwordx4 v{voff + q}, s[{srdb}:{srdb + 3}], {soff} offen offset:{1024 * q} lds", tag=tag)
            for q in range(4)]


def place(gaps, items, first, step):
    for k, x in enumerate(items):
        g = gaps[first + k * step]
        g.extend(x if isinstance(x, list) else [x])


def gate_loads(a):
    srd(a, S_W2, P_GW, M * 2)
    srd(a, 60, P_X, S * M * 2)
    a("v_lshrrev_b32 v2, 3, v1\nv_and_b32 v3, 7, v1\nv_lshlrev_b32 v30, 4, v3\nv_mul_u32_u24 v2, 896, v2\nv_add_u32 v31, v2, v30")
    a(f"s_lshl_b32 s23, {sIDX}, 4\ns_add_u32 s23, s23, {sH}\ns_mul_i32 s3, s23, {8 * 896}")
    for q in range(7):
        a(f"buffer_load_dwordx4 v[{32 + 8 * q}:{35 + 8 * q}], v31, s[60:63], s3 offen offset:{128 * q}")
        a(f"buffer_load_dwordx4 v[{36 + 8 * q}:{39 + 8 * q}], v30, s[{S_W2}:{S_W2 + 3}], 0 offen offset:{128 * q}")


def gate_finish(a):
    a("v_mov_b32 v30, 0")
    for q in range(7):
        for r in range(4):
            a(f"v_dot2_f32_bf16 v30, v{32 + 8 * q + r}, v{36 + 8 * q + r}, v30")
    a("s_nop 3")
    a("v_add_f32_dpp v30, v30, v30 quad_perm:[1,0,3,2] row_mask:0xf bank_mask:0xf")
    a("v_add_f32_dpp v30, v30, v30 quad_perm:[2,3,0,1] row_mask:0xf bank_mask:0xf")
    a("v_add_f32_dpp v30, v30, v30 row_half_mirror row_mask:0xf bank_mask:0xf")
    a(f"v_mul_f32 v30, {f32(-1.4426950408889634)}, v30\nv_exp_f32 v30, v30\nv_add_f32 v30, 1.0, v30\nv_rcp_f32 v30, v30")
    a(f"v_lshrrev_b32 v31, 3, v1\nv_lshlrev_b32 v31, 2, v31\ns_lshl_b32 s23, s23, 5\ns_add_u32 s23, s23, {WS_G}")
    a(f"buffer_store_dword v30, v31, s[{S_WS}:{S_WS + 3}], s23 offen")


def zero_acc(k):
    kind, b = pair_base(k)
    return [f"v_mov_b32 v{b + r}, 0" if kind == "v" else f"v_accvgpr_write_b32 a{b + r}, 0" for r in range(8)]


def pack_pair(k, tmp, scale=None):
    kind, b = pair_base(k)
    out = []
    if kind == "a":
        out += [f"v_accvgpr_read_b32 v{tmp + r}, a{b + r}" for r in range(8)]
        b = tmp
    if scale:
        out += [f"v_mul_f32 v{b + r}, {scale}, v{b + r}" for r in range(8)]
    out += [f"v_cvt_pk_bf16_f32 v{b + r}, v{b + 2 * r}, v{b + 2 * r + 1}" for r in range(4)]
    return out, rng("v", b, 4)


VW, VA, VAB, VWD, VAD, VL16 = 5, 13, 15, 17, 21, 25
ACT0 = 65536


def kv_setup(a, name):
    a(f"s_cmp_lt_u32 {sIDX}, 8\ns_cselect_b32 s12, s{P_WUK}, s{P_WUV}\ns_cselect_b32 s13, s{P_WUK + 1}, s{P_WUV + 1}")
    a(f"s_mov_b32 s14, {DC * H * D * 2}\ns_mov_b32 s15, 0x20000")
    srd(a, S_ACT, P_CKV, S * DC * 2)
    a(f"s_cmp_eq_u32 {sW}, 3\ns_cbranch_scc0 {name}_ng0")
    gate_loads(a)
    a(f"{name}_ng0:")
    w_dma_voff(a, VWD, 8192)
    act_dma_voff(a, VAD, 2048)
    a(f"s_and_b32 s3, {sW}, 1\ns_lshr_b32 s29, {sW}, 1")
    a(f"s_lshl_b32 s24, s3, 17\ns_lshl_b32 s30, {sH}, 9\ns_add_u32 s24, s24, s30\ns_lshl_b32 s30, s29, 8\ns_add_u32 s24, s24, s30")
    a(f"s_lshl_b32 s30, {sW}, 12")
    a(f"s_and_b32 s25, {sIDX}, 7\ns_lshl_b32 s25, s25, 2\ns_add_u32 s25, s25, {sW}\ns_lshl_b32 s25, s25, 17")
    a(f"s_lshl_b32 s64, {sW}, 13\ns_add_u32 s64, s64, {ACT0}\ns_mov_b32 s26, s64")

    def wgrp(slot):
        a(f"s_add_u32 m0, s30, {slot * 16384}")
        a.extend(dma4(VWD, S_W, "s24"))
        a(f"s_add_u32 s24, s24, {32 * 8192}")

    def agrp(g):
        if g == 0:
            a("s_mov_b32 m0, s26")
            a.extend(dma4(VAD, S_ACT, "s25"))
        else:
            a("s_add_u32 m0, s26, 4096\ns_add_u32 s31, s25, 65536")
            a.extend(dma4(VAD, S_ACT, "s31"))
            a("s_add_u32 s25, s25, 128\ns_add_u32 s26, s26, 32768")

    agrp(0)
    wgrp(0), agrp(1)
    wgrp(1), agrp(0)
    wgrp(2), agrp(1)
    wgrp(3), agrp(0)
    a("s_lshl_b32 s3, s3, 13")
    tr_addr(a, VW, range(8), "s3")
    a(f"s_lshl_b32 s29, s29, 14\ns_add_u32 s29, s29, {ACT0}")
    act_addr(a, VAB, "s29")
    a(f"v_mov_b32 v{VA}, v{VAB}\nv_mov_b32 v{VA + 1}, v{VAB + 1}\nv_lshlrev_b32 v{VL16}, 4, v1")
    a(f"s_mov_b32 s27, 0\ns_mov_b32 s28, 0\ns_mov_b32 s29, 2\ns_add_u32 s65, s64, {3 * 32768}")
    a(f"s_cmp_eq_u32 {sW}, 3\ns_cbranch_scc0 {name}_ng1")
    gate_finish(a)
    a(f"{name}_ng1:")
    for k in range(32):
        a.extend(zero_acc(k))


def kv_frag_reads(buf, slot, kk):
    wr, ar = [], []
    for j in range(8):
        b = 64 * buf + 4 * j
        wr.append([f"ds_read_b64_tr_b16 a[{b}:{b + 1}], v{VW + j} offset:{slot * 16384}",
                   f"ds_read_b64_tr_b16 a[{b + 2}:{b + 3}], v{VW + j} offset:{slot * 16384 + 1024}"])
        b += 32
        ar.append(f"ds_read_b128 a[{b}:{b + 3}], v{VA + kk} offset:{j * 2048}")
    return wr, ar


def kv_loop(a, name, vtype):
    a(f"{name}:")
    for q in range(4):
        buf = q % 2
        spine = []
        for i in range(8):
            for jj in range(8):
                j = jj if i % 2 == 0 else 7 - jj
                wf = lambda n: rng("a", 64 * buf + 4 * n, 4)
                af = lambda n: rng("a", 64 * buf + 32 + 4 * n, 4)
                x, y = (af(i), wf(j)) if vtype else (wf(i), af(j))
                t = tile((i // 2) * 8 + j, i % 2)
                spine.append(f"{MF} {t}, {x}, {y}, {t}")
        gaps = [[] for _ in spine]
        wr, ar = kv_frag_reads(1 - buf, (q + 1) % 4, (q + 1) % 2)
        if q % 2 == 1:
            gaps[0] += ["s_add_u32 s27, s27, 32768", f"s_cmp_eq_u32 s27, {3 * 32768}"]
            gaps[1] += ["s_cselect_b32 s27, 0, s27", f"v_add_u32 v{VA}, s27, v{VAB}"]
            gaps[2] += [f"v_add_u32 v{VA + 1}, s27, v{VAB + 1}"]
        flat = []
        for j in range(8):
            flat += wr[j] + [ar[j]]
        place(gaps, flat, 3, 2)
        wd = dma4(VWD, S_W, "s24")
        gaps[2].append(f"s_add_u32 m0, s30, {q * 16384}")
        place(gaps, wd, 4, 6)
        gaps[24].append(f"s_add_u32 s24, s24, {32 * 8192}")
        if q % 2 == 1:
            gaps[26].append("s_mov_b32 m0, s26")
            place(gaps, dma4(VAD, S_ACT, "s25"), 28, 6)
        else:
            gaps[24].append("s_add_u32 s31, s25, 65536")
            gaps[26].append("s_add_u32 m0, s26, 4096")
            place(gaps, dma4(VAD, S_ACT, "s31"), 28, 6)
            gaps[50] += ["s_add_u32 s25, s25, 128", "s_add_u32 s29, s29, 1"]
            gaps[52] += ["s_cmp_ge_u32 s29, 16", f"s_cselect_b32 s25, {BIG}, s25"]
            gaps[54] += ["s_add_u32 s26, s26, 32768", "s_cmp_eq_u32 s26, s65"]
            gaps[55] += ["s_cselect_b32 s26, s64, s26"]
        if q == 3:
            gaps[60] += ["s_add_u32 s28, s28, 1", "s_cmp_lt_u32 s28, 8"]
        a("s_waitcnt vmcnt(16) lgkmcnt(0)\ns_barrier")
        merge(a, spine, gaps)
    a(f"s_cbranch_scc1 {name}")


def kv_epilogue(a, vtype, extra):
    if vtype:
        a(f"s_lshr_b32 s3, {sW}, 1\ns_lshl_b32 s3, s3, 17\ns_and_b32 s29, {sW}, 1\ns_lshl_b32 s29, s29, 13\ns_add_u32 s29, s29, 16384")
    else:
        a(f"s_lshr_b32 s3, {sW}, 1\ns_lshl_b32 s3, s3, 17\ns_and_b32 s29, {sW}, 1\ns_lshl_b32 s29, s29, 12")
    a(f"s_add_u32 s3, s3, s29\ns_lshl_b32 s29, {sH}, 21\ns_add_u32 s3, s3, s29")
    a(f"s_and_b32 s29, {sIDX}, 7\ns_lshl_b32 s29, s29, 18\ns_add_u32 s3, s3, s29")
    order = [(p, j) for p in range(4) for j in range(8)] if vtype else [(p, j) for j in range(8) for p in range(4)]
    for n, (p, j) in enumerate(order):
        off = p * 32768 + j * 1024 if vtype else (j // 2) * 32768 + (j % 2) * 8192 + p * 1024
        if off % 4096 == 0:
            a(f"s_add_u32 s29, s3, {WS_KV + off}")
        ins, reg = pack_pair(p * 8 + j, 32 + 8 * (n % 2))
        a.extend(ins)
        a(f"buffer_store_dwordx4 {reg}, v{VL16}, s[{S_WS}:{S_WS + 3}], s29 offen offset:{off % 4096}")
        a.extend(extra(n))


def kv_phase(a, name):
    kv_setup(a, name)
    a("s_waitcnt vmcnt(24)\ns_barrier")
    wr, ar = kv_frag_reads(0, 0, 0)
    for j in range(8):
        a.extend(wr[j] + [ar[j]])
    a(f"s_cmp_lt_u32 {sIDX}, 8\ns_cbranch_scc0 {name}_vloop")
    for vtype in (0, 1):
        kv_loop(a, f"{name}_{'kv'[vtype]}loop", vtype)
        a("s_waitcnt vmcnt(0) lgkmcnt(0)\ns_barrier")
        qf_prefetch(a)
        kv_epilogue(a, vtype, lambda n: [])
        if vtype == 0:
            a(f"s_branch {name}_kvdone")
    a(f"{name}_kvdone:")


VQ, VF, VFD, VX = 5, 13, 26, 30
X0 = 131072


def qf_stage_dma(par):
    i = [Ins(f"s_add_u32 m0, s66, {par * 32768}")] + dma4(VWD, S_W, "s24")
    i += [Ins(f"s_add_u32 m0, s66, {par * 32768 + 16384}")] + dma4(VFD, S_W2, "s31")
    i += [Ins(f"s_add_u32 s24, s24, {32 * 8192}"), Ins(f"s_add_u32 s31, s31, {32 * 3584}")]
    return i


def qf_x_dma():
    return ([Ins("s_mov_b32 m0, s26")] + dma4(VAD, S_ACT, "s25") +
            [Ins("s_add_u32 s25, s25, 128"), Ins("s_xor_b32 s26, s26, 16384")])


def qf_prefetch(a):
    srd(a, S_W, P_WQ, M * H * D * 2)
    srd(a, S_ACT, P_X, S * M * 2)
    a(f"s_cmp_lt_u32 {sW}, 2\ns_cselect_b32 s16, s{P_W1}, s{P_W3}\ns_cselect_b32 s17, s{P_W1 + 1}, s{P_W3 + 1}")
    a(f"s_mov_b32 s18, {M * F * 2}\ns_mov_b32 s19, 0x20000")
    w_dma_voff(a, VFD, 3584)
    act_dma_voff(a, VAD, 896)
    a(f"s_and_b32 s3, {sW}, 1\ns_lshr_b32 s29, {sW}, 1")
    a(f"s_lshl_b32 s24, s3, 17\ns_lshl_b32 s30, {sH}, 9\ns_add_u32 s24, s24, s30\ns_lshl_b32 s30, s29, 8\ns_add_u32 s24, s24, s30")
    a(f"s_min_u32 s30, {sH}, 13\ns_lshl_b32 s30, s30, 8\ns_mul_i32 s31, s3, {16 * 3584}\ns_add_u32 s31, s31, s30")
    a(f"s_lshl_b32 s25, {sIDX}, 2\ns_add_u32 s25, s25, {sW}\ns_mul_i32 s25, s25, {32 * 896}")
    a(f"s_lshl_b32 s66, {sW}, 12\ns_add_u32 s26, s66, {X0}")
    a.extend(qf_x_dma())
    a.extend(qf_stage_dma(0))
    a.extend(qf_stage_dma(1))
    a("s_xor_b32 s66, s66, 65536")
    a.extend(qf_x_dma())
    a.extend(qf_stage_dma(0))


def qf_wread(f, par):
    b = 4 * (f % 8)
    if f < 8:
        v, off = VQ + f, par * 32768
    else:
        v, off = VF + (f - 8) % 4, par * 32768 + 16384 + ((f - 8) // 4) * 8192
    return [f"ds_read_b64_tr_b16 a[{b}:{b + 1}], v{v} offset:{off}",
            f"ds_read_b64_tr_b16 a[{b + 2}:{b + 3}], v{v} offset:{off + 1024}"]


def qf_xread(kk):
    return [f"ds_read_b128 a[{32 + 16 * kk + 4 * j}:{35 + 16 * kk + 4 * j}], v{VX + kk} offset:{j * 2048}" for j in range(4)]


def qf_phase(a, name):
    a(f"s_and_b32 s3, {sW}, 1\ns_lshl_b32 s29, s3, 13")
    tr_addr(a, VQ, range(8), "s29")
    a(f"s_lshl_b32 s29, s3, 7")
    tr_addr(a, VF, range(4), "0")
    for k in range(4):
        a(f"v_xor_b32 v{VF + k}, s29, v{VF + k}")
    a(f"s_lshr_b32 s3, {sW}, 1\ns_lshl_b32 s3, s3, 13\ns_add_u32 s3, s3, {X0}")
    act_addr(a, VX, "s3")
    for k in range(32):
        a.extend(zero_acc(k))
    a("s_mov_b32 s28, 0")
    a("s_waitcnt vmcnt(52)\ns_barrier")
    a.extend(qf_xread(0))
    for f in range(3):
        a.extend(qf_wread(f, 0))
    a(f"{name}_loop:")
    for par in range(2):
        spine = []
        for i in range(16):
            for jj in range(4):
                j = jj if i % 2 == 0 else 3 - jj
                t = tile((i // 2) * 4 + j, i % 2)
                spine.append(f"{MF} {t}, {rng('a', 4 * (i % 8), 4)}, {rng('a', 32 + 16 * par + 4 * j, 4)}, {t}")
        gaps = [[] for _ in spine]
        for f in range(3, 16):
            r = qf_wread(f, par)
            g = max(0, 4 * f - 14) if f > 4 else (f - 3) * 2
            gaps[g].append(r[0])
            gaps[g + 1].append(r[1])
            if par == 1 and (f < 8 or f >= 12):
                v = VQ + f if f < 8 else VF + f - 12
                gaps[g + 2].append(f"v_xor_b32 v{v}, 0x10000, v{v}")
        if par == 0:
            place(gaps, qf_xread(1), 8, 4)
        gaps[51] += ["s_waitcnt vmcnt(20) lgkmcnt(0)", "s_barrier"]
        if par == 1:
            place(gaps, [f"v_xor_b32 v{VX + k}, 16384, v{VX + k}" for k in range(2)], 21, 4)
            place(gaps, [f"v_xor_b32 v{VQ + k}, 0x10000, v{VQ + k}" for k in range(3)], 29, 4)
        nxt = []
        for f in range(3):
            nxt += qf_wread(f, 1 - par)
        if par == 1:
            xr = qf_xread(0)
            nxt = nxt[:2] + xr + nxt[2:]
        place(gaps, nxt, 52, 1)
        st = qf_stage_dma(1 - par)
        pre = [] if par == 0 else qf_x_dma()
        seq = st[:5] + st[5:] + pre
        pos = 2
        for x in seq:
            gaps[pos].append(x)
            pos += 3 if x.kind == "dma" else 1
        if par == 0:
            gaps[46].append("s_xor_b32 s66, s66, 65536")
        if par == 1:
            gaps[61] += ["s_add_u32 s28, s28, 1", "s_cmp_lt_u32 s28, 7"]
        merge(a, spine, gaps)
    a(f"s_cbranch_scc1 {name}_loop")
    qf_epilogue(a, name)


def qf_epilogue(a, name):
    a(f"s_lshl_b32 s3, {sH}, 4\ns_add_u32 s3, s3, {sIDX}\ns_lshl_b32 s3, s3, 16")
    a(f"s_lshr_b32 s29, {sW}, 1\ns_lshl_b32 s30, s29, 15\ns_add_u32 s3, s3, s30")
    a(f"s_and_b32 s31, {sW}, 1\ns_lshl_b32 s30, s31, 12\ns_add_u32 s3, s3, s30")
    a(f"s_mov_b32 s67, {f32(QSCALE)}")
    for j in range(4):
        a(f"s_add_u32 s30, s3, {WS_Q + (j // 2) * 16384 + (j % 2) * 8192}")
        for p in range(4):
            ins, reg = pack_pair(p * 4 + j, 0, "s67")
            a.extend(ins)
            a(f"buffer_store_dwordx4 {reg}, v{VL16}, s[{S_WS}:{S_WS + 3}], s30 offen offset:{p * 1024}")
    a(f"s_cmp_ge_u32 {sH}, 14\ns_cbranch_scc1 {name}_done")
    a(f"s_lshl_b32 s3, {sIDX}, 1\ns_add_u32 s3, s3, s29\ns_mul_i32 s3, s3, {AO_STEPS}")
    a(f"s_lshl_b32 s30, {sH}, 2\ns_add_u32 s3, s3, s30\ns_lshl_b32 s30, s31, 1\ns_add_u32 s3, s3, s30\ns_lshl_b32 s3, s3, 12")
    a(f"s_mov_b32 s67, {f32(-1.4426950408889634)}")
    for pp in range(2):
        a(f"s_add_u32 s30, s3, {WS_AO + pp * 4096}")
        for j in range(4):
            _, g = pair_base((4 + pp) * 4 + j)
            kind, u = pair_base((6 + pp) * 4 + j)
            t = 32 + 16 * (j % 2)
            if kind == "a":
                a.extend([f"v_accvgpr_read_b32 v{t + 8 + r}, a{u + r}" for r in range(8)])
                u = t + 8
            a.extend([f"v_mul_f32 v{t + r}, s67, v{g + r}" for r in range(8)])
            a.extend([f"v_exp_f32 v{t + r}, v{t + r}" for r in range(8)])
            a.extend([f"v_mul_f32 v{g + r}, v{g + r}, v{u + r}" for r in range(8)])
            a.extend([f"v_add_f32 v{t + r}, 1.0, v{t + r}" for r in range(8)])
            a.extend([f"v_rcp_f32 v{t + r}, v{t + r}" for r in range(8)])
            a.extend([f"v_mul_f32 v{g + r}, v{g + r}, v{t + r}" for r in range(8)])
            a.extend([f"v_cvt_pk_bf16_f32 v{g + r}, v{g + 2 * r}, v{g + 2 * r + 1}" for r in range(4)])
            a(f"buffer_store_dwordx4 {rng('v', g, 4)}, v{VL16}, s[{S_WS}:{S_WS + 3}], s30 offen offset:{j * 1024}")
    a(f"{name}_done:")
```

```python
import sys
sys.path.insert(0, "tools")
from asmlib import Asm, descriptor
import phase_proj as pp, phase_attn as pa, phase_out as po

NAME = "gated_mix__compressed_kv_cla__glu_gated_swiglu__prompt"
REF = f"cdna_kernels/{NAME}.s.ref"


def build():
    kernels = []
    a = Asm()
    pp.entry(a, "proj_kernel", 256)
    pp.kv_phase(a, "pj")
    pp.qf_phase(a, "qf")
    a("s_endpgm")
    kernels.append(("proj_kernel", a, 163840))
    a = Asm()
    pp.entry(a, "attn_kernel", 256)
    pa.attn_phase(a, "at")
    a("s_endpgm")
    kernels.append(("attn_kernel", a, 131072))
    a = Asm()
    pp.entry(a, "out_kernel", 256)
    po.out_phase(a, "ou")
    a("s_endpgm")
    kernels.append(("out_kernel", a, 98304))
    head = [l for l in open(REF).read().split("\n") if l.startswith(";") and "@launch" not in l and "Override" not in l and "grid=ceil" not in l]
    out = head + [f"; @launch kernel={n} grid=(256,1,1) block=(256,1,1) lds={lds}" for n, _, lds in kernels]
    out += ['.amdgcn_target "amdgcn-amd-amdhsa--gfx950"', ".text"]
    for n, a, _ in kernels:
        a.finalize([n])
        out += [f".globl {n}", a.text()]
    out += ['.section .rodata,"a"'] + [descriptor(n) for n, _, _ in kernels]
    return "\n".join(out) + "\n"


if __name__ == "__main__":
    path = sys.argv[1] if len(sys.argv) > 1 else f"cdna_kernels/{NAME}.s"
    open(path, "w").write(build())
```
